```python
import torch

def _softmax(x, axis=-1):
    return torch.softmax(x, dim=axis)
def _gelu(x):
    return torch.nn.functional.gelu(x, approximate="tanh")
def _silu(x):
    return torch.nn.functional.silu(x)
def _sigmoid(x):
    return torch.sigmoid(x)
def _layernorm(x, axis=-1, eps=1e-5):
    m = x.mean(dim=axis, keepdim=True)
    v = x.var(dim=axis, keepdim=True, unbiased=False)
    return (x - m) / torch.sqrt(v + eps)
def _scatter_add(tgt, idx, src, axis=0):
    return tgt.clone().index_add_(axis, idx, src)
def _segment_sum(src, seg, n):
    out = torch.zeros((n,) + src.shape[1:], dtype=src.dtype)
    return out.index_add_(0, seg, src)
def _pad(x, pw):
    flat = tuple(v for pair in reversed(pw) for v in pair)
    return torch.nn.functional.pad(x, flat)

kernel_name = 'concat_heads__gqa_block_cached__gqa_block_cached__near_ridge'

def setup_inputs():

    _w = (lambda a: (lambda t: t.to(torch.bfloat16) if t.is_floating_point() else t)(torch.as_tensor(a)))
    def _A_setup():
        B, Sq, D = 8, 112, 576
        Hq, Hkv, Sk, Dh = 32, 16, 512, 128
        assert Hq % Hkv == 0, (Hq, Hkv)
        return {
            "x": _w((lambda *s: torch.randn(*s, dtype=torch.bfloat16) * 0.8)(B, Sq, D)),
            "k_cache": _w((lambda *s: torch.randn(*s, dtype=torch.bfloat16) * 0.8)(B, Hkv, Sk, Dh)),
            "v_cache": _w((lambda *s: torch.randn(*s, dtype=torch.bfloat16) * 0.05)(B, Hkv, Sk, Dh)),
            "wq": _w((lambda *s: torch.randn(*s, dtype=torch.bfloat16) * 0.8)(D, Hq * Dh) * (D ** -0.5)),
            "wo": _w((lambda *s: torch.randn(*s, dtype=torch.bfloat16) * 0.05)(Hq * Dh, D) * ((Hq * Dh) ** -0.5)),
        }
    _A_in = _A_setup()

    def _B_setup():
        B, Sq, D = 8, 112, 576
        Hq, Hkv, Sk, Dh = 32, 16, 512, 128
        assert Hq % Hkv == 0, (Hq, Hkv)
        return {
            "x": _w((lambda *s: torch.randn(*s, dtype=torch.bfloat16) * 0.8)(B, Sq, D)),
            "k_cache": _w((lambda *s: torch.randn(*s, dtype=torch.bfloat16) * 0.8)(B, Hkv, Sk, Dh)),
            "v_cache": _w((lambda *s: torch.randn(*s, dtype=torch.bfloat16) * 0.05)(B, Hkv, Sk, Dh)),
            "wq": _w((lambda *s: torch.randn(*s, dtype=torch.bfloat16) * 0.8)(D, Hq * Dh) * (D ** -0.5)),
            "wo": _w((lambda *s: torch.randn(*s, dtype=torch.bfloat16) * 0.05)(Hq * Dh, D) * ((Hq * Dh) ** -0.5)),
        }
    _B_in = _B_setup()

    return {
        "A_x": _A_in["x"],
        "A_k_cache": _A_in["k_cache"],
        "A_v_cache": _A_in["v_cache"],
        "A_wq": _A_in["wq"],
        "A_wo": _A_in["wo"],
        "B_x": _B_in["x"],
        "B_k_cache": _B_in["k_cache"],
        "B_v_cache": _B_in["v_cache"],
        "B_wq": _B_in["wq"],
        "B_wo": _B_in["wo"],
    }

def reference(A_x, A_k_cache, A_v_cache, A_wq, A_wo, B_x, B_k_cache, B_v_cache, B_wq, B_wo):
    def _A_ref(x, k_cache, v_cache, wq, wo):
        B, Sq, D = x.shape
        Hq, Dh = 32, 128
        Hkv = k_cache.shape[1]
        rep = Hq // Hkv
        q = (lambda x, *d: x.permute(*d))((x @ wq).reshape(B, Sq, Hq, Dh), 0, 2, 1, 3)
        k = (lambda x, n, axis: torch.repeat_interleave(x, n, dim=axis))(k_cache, rep, axis=1)
        v = (lambda x, n, axis: torch.repeat_interleave(x, n, dim=axis))(v_cache, rep, axis=1)
        scores = torch.einsum("bhqd,bhkd->bhqk", q, k) * (Dh ** -0.5)
        p = _softmax(scores, axis=-1)
        o = torch.einsum("bhqk,bhkd->bhqd", p, v)
        return (lambda x, *d: x.permute(*d))(o, 0, 2, 1, 3).reshape(B, Sq, Hq * Dh) @ wo

    def _B_ref(x, k_cache, v_cache, wq, wo):
        B, Sq, D = x.shape
        Hq, Dh = 32, 128
        Hkv = k_cache.shape[1]
        rep = Hq // Hkv
        q = (lambda x, *d: x.permute(*d))((x @ wq).reshape(B, Sq, Hq, Dh), 0, 2, 1, 3)
        k = (lambda x, n, axis: torch.repeat_interleave(x, n, dim=axis))(k_cache, rep, axis=1)
        v = (lambda x, n, axis: torch.repeat_interleave(x, n, dim=axis))(v_cache, rep, axis=1)
        scores = torch.einsum("bhqd,bhkd->bhqk", q, k) * (Dh ** -0.5)
        p = _softmax(scores, axis=-1)
        o = torch.einsum("bhqk,bhkd->bhqd", p, v)
        return (lambda x, *d: x.permute(*d))(o, 0, 2, 1, 3).reshape(B, Sq, Hq * Dh) @ wo

    a = _A_ref(A_x, A_k_cache, A_v_cache, A_wq, A_wo)
    b = _B_ref(B_x, B_k_cache, B_v_cache, B_wq, B_wo)
    return torch.concatenate([a, b], axis=-1)
```

```python
class Asm:
    def __init__(self):
        self.lines = []
        self.vmq = []
    def e(self, s):
        self.lines.append("    " + s)
    def c(self, s):
        self.lines.append("    ; " + s)
    def label(self, s):
        self.lines.append(s + ":")
    def raw(self, s):
        self.lines.append(s)
    def vm(self, s, tag):
        self.e(s); self.vmq.append(tag)
    def vm_wait(self, tags, extra=""):
        if isinstance(tags, str) or isinstance(tags, tuple): tags = [tags]
        last = -1
        for i, t in enumerate(self.vmq):
            if t in tags: last = i
        n = len(self.vmq) - 1 - last
        if n > 63: last += n - 63; n = 63
        if last < 0 and not extra:
            return
        if last >= 0:
            self.e(f"s_waitcnt vmcnt({n}) {extra}".rstrip())
            self.vmq = self.vmq[last+1:]
        else:
            self.e(f"s_waitcnt {extra}")
    def text(self):
        return "\n".join(self.lines) + "\n"

def vr(b, n=1):
    return f"v{b}" if n == 1 else f"v[{b}:{b+n-1}]"
def sr(b, n=1):
    return f"s{b}" if n == 1 else f"s[{b}:{b+n-1}]"

def interleave(a, mf, fill, lead=0):
    n = len(mf)
    def put(f):
        if callable(f): f()
        elif isinstance(f, (list, tuple)):
            for x in f: put(x)
        else: a.e(f)
    k = 0
    for i in range(lead):
        if k < len(fill): put(fill[k]); k += 1
    rem = len(fill) - k
    for i, m in enumerate(mf):
        a.e(m)
        tgt = k + (rem * (i + 1)) // n - (rem * i) // n
        while k < tgt:
            put(fill[k]); k += 1
    while k < len(fill):
        put(fill[k]); k += 1

B128_GROUPS = [list(range(0,4))+list(range(12,16))+list(range(20,28)),
               list(range(4,12))+list(range(16,20))+list(range(28,32)),
               list(range(32,36))+list(range(44,48))+list(range(52,60)),
               list(range(36,44))+list(range(48,52))+list(range(60,64))]
def conflicts(addrs, kind):
    if kind == "b128":
        groups, nb, width = B128_GROUPS, 64, 16
    elif kind == "b64":
        groups, nb, width = [list(range(32)), list(range(32,64))], 64, 8
    else: raise ValueError
    cyc = 0
    for g in groups:
        banks = {}
        for l in g:
            for w in range(width // 4):
                a = addrs[l] + 4*w
                banks.setdefault((a//4) % nb, set()).add(a//4)
        cyc += max(len(v) for v in banks.values())
    return cyc
```

```python
from asmlib import *
import struct, math

K1_LDS = 161792
XS = 49152; KR = 70656; VR = 119808; WR = 57344
def fbits(x): return struct.unpack("<I", struct.pack("<f", x))[0]
CC = 0.08838834764831845 * math.log2(math.e)

def gen_k1(label="attn_kernel", exp=""):
    a = Asm(); e = a.e
    a.raw(f".globl {label}"); a.raw(".p2align 8"); a.raw(f".type {label},@function"); a.label(label)
    e("s_cmp_ge_u32 s2, 256"); e(f"s_cbranch_scc1 {label}_exit")
    e("s_load_dwordx8 s[4:11], s[0:1], 0")
    e("s_load_dwordx8 s[12:19], s[0:1], 40")
    e("s_load_dwordx2 s[40:41], s[0:1], 96")
    e("s_load_dwordx2 s[68:69], s[0:1], 32"); e("s_load_dwordx2 s[70:71], s[0:1], 72")
    e("s_lshr_b32 s42, s2, 5")
    e("s_bfe_u32 s43, s2, 0x10004")
    e("s_and_b32 s44, s2, 15")
    e("v_lshrrev_b32 v1, 6, v0"); e("s_nop 1"); e("v_readfirstlane_b32 s45, v1")
    e("v_and_b32 v2, 63, v0")
    e("s_waitcnt lgkmcnt(0)")
    e("s_cmp_eq_u32 s43, 0")
    for i in range(8): e(f"s_cselect_b32 s{4+i}, s{4+i}, s{12+i}")
    e("s_mul_i32 s46, s42, 129024")
    e("s_add_u32 s20, s4, s46"); e("s_addc_u32 s21, s5, 0"); e("s_mov_b32 s22, 129024"); e("s_mov_b32 s23, 0x00020000")
    e("s_lshl_b32 s46, s44, 9")
    e("s_add_u32 s24, s10, s46"); e("s_addc_u32 s25, s11, 0"); e("s_sub_u32 s26, 4718592, s46"); e("s_mov_b32 s27, 0x00020000")
    e("s_lshl_b32 s46, s42, 4"); e("s_add_u32 s46, s46, s44"); e("s_lshl_b32 s46, s46, 17")
    e("s_add_u32 s28, s6, s46"); e("s_addc_u32 s29, s7, 0"); e("s_mov_b32 s30, 131072"); e("s_mov_b32 s31, 0x00020000")
    e("s_add_u32 s32, s8, s46"); e("s_addc_u32 s33, s9, 0"); e("s_mov_b32 s34, 131072"); e("s_mov_b32 s35, 0x00020000")
    e("s_mul_i32 s46, s44, 2064384"); e("s_lshl_b32 s47, s43, 3"); e("s_add_u32 s47, s47, s42"); e("s_mul_i32 s47, s47, 129024"); e("s_add_u32 s46, s46, s47")
    e("s_add_u32 s36, s40, s46"); e("s_addc_u32 s37, s41, 0"); e("s_mov_b32 s38, 129024"); e("s_mov_b32 s39, 0x00020000")
    e("s_cmp_eq_u32 s43, 0"); e("s_cselect_b32 s72, s68, s70"); e("s_cselect_b32 s73, s69, s71")
    e("s_mul_i32 s46, s44, 294912"); e("s_add_u32 s72, s72, s46"); e("s_addc_u32 s73, s73, 0"); e("s_mov_b32 s74, 294912"); e("s_mov_b32 s75, 0x00020000")
    e("s_mov_b32 s57, 160768")
    e(f"s_mov_b32 s48, 0x{fbits(CC):08x}"); e("s_mov_b32 s49, s48")
    e(f"s_mov_b32 s50, 0x{fbits(-CC):08x}"); e(f"s_mov_b32 s51, 0x{fbits(8.0/CC):08x}")
    e("s_lshl_b32 s52, s45, 10")
    e("s_lshl_b32 s53, s45, 15")
    e("s_lshl_b32 s54, s45, 11")
    e("s_min_u32 s55, s45, 6"); e("s_lshl_b32 s55, s55, 10")
    stamps = [0]
    def stamp(a):
        if "stamp" not in exp: return
        a.e("s_memtime s[58:59]"); a.e("s_waitcnt lgkmcnt(0)"); a.e(f"v_writelane_b32 v30, s58, {stamps[0]}"); stamps[0] += 1
    stamp(a)
    VWQ0, VWQ1, VX, VAT0, VAT1, VBX, VKO, VVO = 3, 4, 5, 6, 7, 8, 9, 10
    T = 11
    e(f"v_lshrrev_b32 v{T}, 5, v2")
    e(f"v_bfe_u32 v{T+1}, v2, 1, 4")
    e(f"v_and_b32 v{T+2}, 1, v2"); e(f"v_lshlrev_b32 v{T+2}, 4, v{T+2}")
    e("s_bfe_u32 s46, s45, 0x10001"); e("s_lshl_b32 s46, s46, 2")
    for j in range(2):
        e(f"v_add_u32 v{T+3}, {2*j}, v{T}")
        e(f"v_or_b32 v{T+4}, s46, v{T+3}")
        e(f"v_xor_b32 v{T+4}, v{T+4}, v{T+1}"); e(f"v_lshlrev_b32 v{T+4}, 5, v{T+4}")
        e(f"v_lshlrev_b32 v{T+3}, 13, v{T+3}")
        e(f"v_add3_u32 v{VWQ0+j}, v{T+3}, v{T+4}, v{T+2}")
    def fx(dst, idx, t):
        e(f"v_lshrrev_b32 v{t}, 1, v{idx}")
        e(f"v_xor_b32 v{dst}, v{idx}, v{t}"); e(f"v_and_b32 v{dst}, 1, v{dst}"); e(f"v_lshlrev_b32 v{dst}, 1, v{dst}")
        e(f"v_or_b32 v{dst}, v{dst}, v{t}")
    e(f"v_lshrrev_b32 v{T}, 4, v2"); fx(T+1, T, T+2)
    e(f"v_and_b32 v{T+2}, 3, v2"); e(f"v_xor_b32 v{T+2}, v{T+2}, v{T+1}"); e(f"v_lshlrev_b32 v{T+2}, 4, v{T+2}")
    e(f"v_lshrrev_b32 v{T+3}, 2, v2"); e("s_min_u32 s46, s45, 6"); e("s_lshl_b32 s46, s46, 4"); e(f"v_add_u32 v{T+3}, s46, v{T+3}")
    e("s_movk_i32 s46, 1152"); e(f"v_mul_lo_u32 v{T+3}, v{T+3}, s46"); e(f"v_add_u32 v{VX}, v{T+3}, v{T+2}")
    e(f"v_lshrrev_b32 v{T}, 4, v2"); e(f"v_bfe_u32 v{T+1}, v2, 2, 2"); e(f"v_and_b32 v{T+2}, 3, v2")
    e(f"v_lshlrev_b32 v{T+3}, 3, v{T}"); e(f"v_add_u32 v{T+3}, v{T+3}, v{T+1}"); e(f"v_lshlrev_b32 v{T+3}, 9, v{T+3}")
    e(f"v_lshlrev_b32 v{T+2}, 3, v{T+2}"); e(f"v_add_u32 v{T+3}, v{T+3}, v{T+2}")
    e(f"v_and_b32 v{T+4}, 1, v{T}"); e(f"v_lshlrev_b32 v{T+4}, 2, v{T+4}"); e(f"v_or_b32 v{T+4}, v{T+4}, v{T+1}")
    e("s_lshl_b32 s46, s45, 1")
    for tt in range(2):
        e(f"s_add_u32 s47, s46, {tt}"); e(f"v_xor_b32 v{T+5}, s47, v{T+4}"); e(f"v_lshlrev_b32 v{T+5}, 5, v{T+5}")
        e(f"v_add_u32 v{VAT0+tt}, v{T+3}, v{T+5}")
    e(f"v_bfe_u32 v{T+1}, v2, 2, 2"); fx(T+2, T+1, T+3)
    e(f"v_xor_b32 v{T+2}, v{T+2}, v{T}"); e(f"v_lshlrev_b32 v{T+2}, 4, v{T+2}")
    e(f"v_and_b32 v{T+3}, 15, v2"); e(f"v_lshlrev_b32 v{T+3}, 6, v{T+3}")
    e(f"v_add3_u32 v{VBX}, v{T+3}, v{T+2}, s55")
    e(f"v_sub_u32 v{VBX}, v{VBX}, s55") if False else None
    a.lines.pop()
    e(f"v_add_u32 v{VBX}, v{T+3}, v{T+2}"); e(f"v_add_u32 v{VBX}, {XS}, v{VBX}")
    e(f"v_and_b32 v{T+1}, 15, v2")
    e("s_lshl_b32 s46, s45, 2"); e(f"v_add_u32 v{T+2}, s46, v{T}"); e(f"v_and_b32 v{T+2}, 15, v{T+2}")
    e(f"v_xor_b32 v{T+2}, v{T+2}, v{T+1}"); e(f"v_lshlrev_b32 v{T+2}, 4, v{T+2}")
    e(f"v_lshlrev_b32 v{T+3}, 8, v{T}"); e(f"v_add_u32 v{T+3}, s52, v{T+3}"); e(f"v_add_u32 v{VKO}, v{T+3}, v{T+2}")
    e(f"v_lshlrev_b32 v{T+2}, 2, v{T}"); e(f"v_xor_b32 v{T+2}, v{T+2}, v{T+1}"); e(f"v_lshlrev_b32 v{T+2}, 4, v{T+2}")
    e(f"v_add_u32 v{VVO}, v{T+3}, v{T+2}")

    WOV = 26
    for j in range(3):
        e(f"s_lshl_b32 s46, s45, 6"); e(f"v_add_u32 v{T}, s46, v2"); e(f"v_add_u32 v{T}, {j*512}, v{T}")
        e("s_movk_i32 s46, 1821"); e(f"v_mul_lo_u32 v{T+1}, v{T}, s46"); e(f"v_lshrrev_b32 v{T+1}, 17, v{T+1}")
        e(f"v_mul_u32_u24 v{T+2}, 72, v{T+1}"); e(f"v_sub_u32 v{T+2}, v{T}, v{T+2}")
        e(f"v_bfe_u32 v{T+3}, v{T+1}, 1, 1"); e(f"v_bfe_u32 v{T+4}, v{T+1}, 3, 1"); e(f"v_lshl_or_b32 v{T+3}, v{T+4}, 1, v{T+3}")
        e(f"v_lshlrev_b32 v{T+3}, 1, v{T+3}"); e(f"v_xor_b32 v{T+2}, v{T+2}, v{T+3}"); e(f"v_lshlrev_b32 v{T+2}, 4, v{T+2}")
        e("s_movk_i32 s46, 1152"); e(f"v_mul_lo_u32 v{T+1}, v{T+1}, s46"); e(f"v_add_u32 v{WOV+j}, v{T+1}, v{T+2}")
    e("s_cmp_lt_u32 s45, 2"); e("s_cselect_b32 s46, 0, 0x7ff00000"); e(f"v_add_u32 v{WOV+2}, s46, v{WOV+2}")
    def issue_wo(a, u):
        if "nodma" in exp: return
        for j in range(3):
            a.e(f"s_add_u32 s46, s52, {WR + (u%5)*18432 + j*8192}")
            if j < 2: a.e("s_mov_b32 m0, s46")
            else: a.e("s_cmp_lt_u32 s45, 2"); a.e("s_cselect_b32 m0, s46, s57")
            a.e(f"s_mov_b32 s47, {u*18432}")
            a.vm(f"buffer_load_dwordx4 v{WOV+j}, s[72:75], s47 offen lds", ("wo", u))
    def dma(a, m0base_sreg, m0imm, voff, srd, soff_sreg, soff_imm, tag):
        if "nodma" in exp: return
        if "nokv" in exp and tag[0] in "kv": return
        if "nopw" in exp and tag[0] == "p": return
        a.e(f"s_add_u32 s46, {m0base_sreg}, {m0imm}"); a.e("s_mov_b32 m0, s46")
        if soff_sreg: a.e(f"s_add_u32 s47, {soff_sreg}, {soff_imm}")
        else: a.e(f"s_mov_b32 s47, {soff_imm}")
        a.vm(f"buffer_load_dwordx4 v{voff}, {srd}, s47 offen lds", tag)
    def issue_p(s):
        sl = s % 3
        for j in range(2):
            dma(a, "s54", sl*16384 + j*1024, VWQ0+j, "s[24:27]", "s53", s*262144, ("p", s))
        dma(a, "s55", XS + sl*7168, VX, "s[20:23]", None, s*64, ("p", s))
    def issue_k(a, s): dma(a, "s52", KR + (s % 6)*8192, VKO, "s[28:31]", None, s*8192, ("k", s))
    def issue_v(a, s): dma(a, "s52", VR + (s % 5)*8192, VVO, "s[32:35]", None, s*8192, ("v", s))
    ACC1 = 128; AF = [32, 40]; BF = [48, 76]
    def read_fr(s):
        sl = s % 3; o = []
        for tt in range(2):
            for hh in range(2):
                o.append(f"ds_read_b64_tr_b16 {vr(AF[s&1]+tt*4+hh*2,2)}, v{VAT0+tt} offset:{sl*16384+hh*2048}")
        for qt in range(7):
            o.append(f"ds_read_b128 {vr(BF[s&1]+qt*4,4)}, v{VBX} offset:{sl*7168+qt*1024}")
        return o
    units = [("k",0),("k",1),("v",0),("k",2),("v",1),("k",3),("v",2),("k",4),("v",3),("k",5),("v",4)]
    def issue_unit(u):
        (issue_k if u[0] == "k" else issue_v)(a, u[1])
    for s in range(3): issue_p(s)
    for i in range(56): e(f"v_mov_b32 v{ACC1+i}, 0")
    a.vm_wait([("p", 0)]); e("s_barrier")
    for x in read_fr(0): e(x)
    for s in range(18):
        a.vm_wait([("p", s+1)] if s < 17 else [], "lgkmcnt(0)"); e("s_barrier")
        if s + 3 < 18: issue_p(s + 3)
        if s < 11: issue_unit(units[s])
        mf = []
        for tt in range(2):
            for qt in range(7):
                d = ACC1 + (tt*7+qt)*4
                mf.append(f"v_mfma_f32_16x16x32_bf16 {vr(d,4)}, {vr(AF[s&1]+tt*4,4)}, {vr(BF[s&1]+qt*4,4)}, {vr(d,4)}")
        interleave(a, mf, read_fr(s+1) if s < 17 else [])
    e(f"v_lshrrev_b32 v{T}, 4, v2"); e(f"v_and_b32 v{T+1}, 15, v2")
    e("s_lshr_b32 s46, s45, 2"); e("s_mul_i32 s46, s46, 28672")
    e(f"v_lshlrev_b32 v{T+2}, 8, v{T+1}"); e(f"v_add_u32 v{T+2}, s46, v{T+2}")
    e(f"v_and_b32 v{T+3}, 1, v{T}"); e(f"v_lshlrev_b32 v{T+3}, 3, v{T+3}"); e(f"v_add_u32 v{T+2}, v{T+2}, v{T+3}")
    e(f"v_lshrrev_b32 v{T+3}, 1, v{T}"); e("s_and_b32 s46, s45, 3"); e("s_lshl_b32 s46, s46, 2"); e(f"v_add_u32 v{T+3}, s46, v{T+3}")
    for tt in range(2):
        e(f"v_add_u32 v{T+4}, {2*tt}, v{T+3}"); e(f"v_xor_b32 v{T+4}, v{T+4}, v{T+1}"); e(f"v_lshlrev_b32 v{T+4}, 4, v{T+4}")
        e(f"v_add_u32 v{T+5+tt}, v{T+2}, v{T+4}")
    e("s_nop 7")
    for tt in range(2):
        for qt in range(7):
            d = ACC1 + (tt*7+qt)*4
            e(f"v_cvt_pk_bf16_f32 v{d}, v{d}, v{d+1}"); e(f"v_cvt_pk_bf16_f32 v{d+1}, v{d+2}, v{d+3}")
            e(f"ds_write_b64 v{T+5+tt}, {vr(d,2)} offset:{qt*4096}")
    a.vm_wait([("k",0),("k",1),("v",0)], "lgkmcnt(0)"); e("s_barrier")
    if "nop2" in exp: e("s_endpgm")
    e("s_cmp_eq_u32 s45, 7"); e(f"s_cbranch_scc1 {label}_w7")
    stamp(a)
    vmq_save = list(a.vmq)
    OACC = 128; SB = [192, 208]; QF = 96; KF = 64; VF = 32; PB = [224, 244]; KA = 232; VA = 240
    MREF, MTHR, NMC, L, ALPHA = 20, 21, 22, 24, 23
    e(f"v_and_b32 v{T}, 31, v2"); e(f"v_lshrrev_b32 v{T+1}, 5, v2"); e(f"v_and_b32 v{T+2}, 15, v2")
    e(f"v_xor_b32 v{T+2}, v{T+2}, v{T+1}"); e(f"v_lshlrev_b32 v{T+3}, 8, v{T}")
    e("s_lshl_b32 s46, s45, 13")
    for ks in range(8):
        e(f"v_xor_b32 v{T+4}, {2*ks}, v{T+2}"); e(f"v_lshlrev_b32 v{T+4}, 4, v{T+4}"); e(f"v_add_u32 v{T+4}, v{T+4}, v{T+3}")
        e(f"v_add_u32 v{KA+ks}, {KR}, v{T+4}")
        e(f"v_add_u32 v{T+4}, s46, v{T+4}")
        e(f"ds_read_b128 {vr(QF+ks*4,4)}, v{T+4}")
    def read_k(s, ks): return f"ds_read_b128 {vr(KF+ks*4,4)}, v{KA+ks} offset:{(s%6)*8192}"
    for ks in range(8): e(read_k(0, ks))
    e(f"v_bfe_u32 v{T}, v2, 2, 2"); e(f"v_lshlrev_b32 v{T+2}, 2, v{T+1}"); e(f"v_add_u32 v{T+2}, v{T+2}, v{T}"); e(f"v_lshlrev_b32 v{T+2}, 8, v{T+2}")
    e(f"v_and_b32 v{T+3}, 3, v2"); e(f"v_lshlrev_b32 v{T+3}, 3, v{T+3}"); e(f"v_add_u32 v{T+2}, v{T+2}, v{T+3}"); e(f"v_add_u32 v{T+2}, {VR}, v{T+2}")
    e(f"v_bfe_u32 v{T+3}, v2, 4, 1"); e(f"v_lshlrev_b32 v{T+4}, 1, v{T}"); e(f"v_xor_b32 v{T+3}, v{T+3}, v{T+4}")
    for dt in range(4):
        e(f"v_xor_b32 v{T+4}, {2*dt}, v{T+3}"); e(f"v_lshlrev_b32 v{T+4}, 5, v{T+4}"); e(f"v_add_u32 v{VA+dt}, v{T+2}, v{T+4}")
    def read_v(s, dt, u):
        return [f"ds_read_b64_tr_b16 {vr(VF+(dt*2+u)*4+ee*2,2)}, v{VA+dt} offset:{(s%5)*8192+u*4096+ee*2048}" for ee in range(2)]
    for i in range(64): e(f"v_mov_b32 v{OACC+i}, 0")
    e(f"v_mov_b32 v{L}, 0"); e(f"v_mov_b32 v{L+1}, 0"); e("s_mov_b32 s56, 0")
    e("s_waitcnt lgkmcnt(0)")
    def qk(s):
        S = SB[s & 1]
        return [f"v_mfma_f32_32x32x16_bf16 {vr(S,16)}, {vr(KF+ks*4,4)}, {vr(QF+ks*4,4)}, " + ("0" if ks == 0 else vr(S,16)) for ks in range(8)]
    def pv(s):
        return [f"v_mfma_f32_32x32x16_bf16 {vr(OACC+dt*16,16)}, {vr(VF+(dt*2+u)*4,4)}, {vr(PB[s&1]+u*4,4)}, {vr(OACC+dt*16,16)}" for dt in range(4) for u in range(2)]
    for i, m in enumerate(qk(0)):
        e(m); e(read_k(1, i))
    slow = []
    def softmax(s):
        S = SB[s & 1]; t = T; P = PB[s & 1]
        o = []
        o += [f"v_max3_f32 v{t+i}, v{S+3*i}, v{S+3*i+1}, v{S+3*i+2}" for i in range(5)]
        o += [f"v_max3_f32 v{t}, v{t}, v{t+1}, v{S+15}", f"v_max3_f32 v{t+2}, v{t+2}, v{t+3}, v{t+4}", f"v_max_f32 v{t}, v{t}, v{t+2}"]
        sl = [f"v_mov_b32 v{t+1}, v{t}", "s_nop 1", f"v_permlane32_swap_b32 v{t}, v{t+1}", "s_nop 1", f"v_max_f32 v{t}, v{t}, v{t+1}"]
        if s == 0:
            sl += [f"v_mov_b32 v{MREF}, v{t}", f"v_mul_f32 v{NMC}, s50, v{t}", f"v_add_f32 v{MTHR}, s51, v{t}"]
            o.append(sl)
        else:
            sl += [f"v_max_f32 v{t}, v{t}, v{MREF}", f"v_sub_f32 v{t+1}, v{MREF}, v{t}", f"v_mul_f32 v{t+1}, s48, v{t+1}", f"v_exp_f32 v{ALPHA}, v{t+1}",
                   f"v_mov_b32 v{MREF}, v{t}", f"v_mul_f32 v{NMC}, s50, v{t}", f"v_add_f32 v{MTHR}, s51, v{t}", "s_mov_b32 s56, 1"]
            sl += [f"v_mul_f32 v{L}, v{L}, v{ALPHA}", f"v_mul_f32 v{L+1}, v{L+1}, v{ALPHA}", f"s_branch {label}_ret{s}"]
            slow.append((f"{label}_slow{s}", sl))
            o.append([f"v_cmp_gt_f32 vcc, v{t}, v{MTHR}", f"s_cbranch_vccnz {label}_slow{s}", lambda: a.label(f"{label}_ret{s}")])
            sl = ["s_nop 7", "s_nop 7"] + [f"v_mul_f32 v{OACC+i}, v{OACC+i}, v{ALPHA}" for i in range(64)] + ["s_mov_b32 s56, 0", f"s_branch {label}_rr{s}"]
            slow.append((f"{label}_resc{s}", sl))
        fm = lambda i: f"v_fma_f32 v{S+i}, v{S+i}, s48, v{NMC}"
        o += [fm(0), fm(1), fm(2), fm(3)]
        for i in range(8):
            o.append(f"v_exp_f32 v{S+2*i}, v{S+2*i}"); o.append(f"v_exp_f32 v{S+2*i+1}, v{S+2*i+1}")
            if i < 6: o += [fm(2*i+4), fm(2*i+5)]
            if i >= 1:
                j = i - 1
                o.append(f"v_add_f32 v{L}, v{L}, v{S+2*j}"); o.append(f"v_add_f32 v{L+1}, v{L+1}, v{S+2*j+1}"); o.append(f"v_cvt_pk_bf16_f32 v{P+j}, v{S+2*j}, v{S+2*j+1}")
        o.append("s_nop 0")
        o.append(f"v_add_f32 v{L}, v{L}, v{S+14}"); o.append(f"v_add_f32 v{L+1}, v{L+1}, v{S+15}"); o.append(f"v_cvt_pk_bf16_f32 v{P+7}, v{S+14}, v{S+15}")
        return o
    def top(a, s):
        tags = [t for t in [("k", s+2), ("v", s)] if t[1] < 16]
        if s < 16:
            a.vm_wait(tags, "lgkmcnt(0)"); a.e("s_barrier")
        else:
            a.e("s_waitcnt lgkmcnt(0)")
        if s == 0: issue_k(a, 6)
        if s + 7 < 16: issue_k(a, s + 7)
        if 5 <= s + 4 < 16: issue_v(a, s + 4)
        if s == 11: issue_wo(a, 0)
        if s == 13: issue_wo(a, 1)
        if s == 14: issue_wo(a, 2)
    for s in range(17):
        a.c(f"---- iter {s}")
        top(a, s); stamp(a)
        mf = (qk(s+1) if s < 15 else []) ; nq = len(mf)
        mf = mf + (pv(s-1) if s >= 1 else [])
        sm = softmax(s) if s < 16 else []
        att = [[] for _ in mf]
        vrd = [read_v(s, dt, u) for dt in range(4) for u in range(2)] if s < 16 else []
        krd = [read_k(s+2, ks) for ks in range(8)] if s + 2 < 16 else []
        if s >= 1:
            for i in range(8):
                if vrd: att[nq+i] += vrd[i]
                if krd: att[nq+i].append(krd[i])
        n = len(mf); k = 0
        def put(f):
            if callable(f): f()
            elif isinstance(f, (list, tuple)):
                for x in f: put(x)
            else: e(f)
        for i, m in enumerate(mf):
            e(m)
            for x in att[i]: e(x)
            tgt = (len(sm) * (i + 1)) // n
            while k < tgt: put(sm[k]); k += 1
        while k < len(sm): put(sm[k]); k += 1
        if s == 0:
            for i in range(8):
                for x in vrd[i]: e(x)
                e(krd[i])
        if 1 <= s < 16:
            e("s_cmp_lg_u32 s56, 0"); e(f"s_cbranch_scc1 {label}_resc{s}"); a.label(f"{label}_rr{s}")
    e(f"v_add_f32 v{L}, v{L}, v{L+1}"); e(f"v_mov_b32 v{L+1}, v{L}"); e("s_nop 1"); e(f"v_permlane32_swap_b32 v{L}, v{L+1}"); e("s_nop 1")
    e(f"v_add_f32 v{L}, v{L}, v{L+1}"); e(f"v_rcp_f32 v{L}, v{L}")
    e(f"v_and_b32 v{T}, 31, v2"); e("s_lshl_b32 s46, s45, 5"); e(f"v_add_u32 v{T}, s46, v{T}"); e(f"v_lshlrev_b32 v{T}, 8, v{T}")
    e(f"v_and_b32 v{T+1}, 15, v2"); e(f"v_lshrrev_b32 v{T+2}, 5, v2"); e(f"v_xor_b32 v{T+1}, v{T+1}, v{T+2}")
    e("s_nop 7"); e("s_nop 7")
    for dt in range(4):
        for rp in range(2):
            d = OACC + dt*16 + rp*8
            for i in range(8): e(f"v_mul_f32 v{d+i}, v{d+i}, v{L}")
            for i in range(4): e(f"v_cvt_pk_bf16_f32 v{d+i}, v{d+2*i}, v{d+2*i+1}")
            e(f"v_xor_b32 v{T+2}, {4*dt+2*rp}, v{T+1}"); e(f"v_lshl_add_u32 v{T+2}, v{T+2}, 4, v{T}")
            e(f"v_permlane32_swap_b32 v{d}, v{d+2}"); e(f"v_permlane32_swap_b32 v{d+1}, v{d+3}")
            e("s_nop 1")
            e(f"ds_write_b128 v{T+2}, {vr(d,4)}")
    a.label(f"{label}_p3")
    e("s_waitcnt lgkmcnt(0)"); e("s_barrier")
    stamp(a)
    issue_wo(a, 3); issue_wo(a, 4)
    ACC3 = 32; AFR = 172; BFR = [192, 220]; AAN = 3; AAW = 8; BAD = 20; U = 13
    e(f"v_lshrrev_b32 v{U}, 4, v2"); e(f"v_bfe_u32 v{U+1}, v2, 2, 2"); e(f"v_and_b32 v{U+2}, 3, v2")
    e(f"v_and_b32 v{U+3}, 1, v{U}"); e(f"v_lshl_add_u32 v{U+4}, v{U+3}, 3, v{U+1}")
    e("s_movk_i32 s46, 1152"); e(f"v_mul_lo_u32 v{U+4}, v{U+4}, s46"); e(f"v_lshl_add_u32 v{U+4}, v{U+2}, 3, v{U+4}")
    e(f"v_lshrrev_b32 v{U+5}, 1, v{U+1}"); e(f"v_lshl_or_b32 v{U+5}, v{U+3}, 1, v{U+5}")
    e(f"v_lshrrev_b32 v{U+3}, 1, v{U}")
    e("s_movk_i32 s46, 18432"); e(f"v_mul_lo_u32 v{U+6}, v{U+3}, s46"); e(f"v_add_u32 v{U+6}, {WR}, v{U+6}")
    e(f"v_xor_b32 v{U+3}, 1, v{U+3}"); e("s_mov_b32 s46, 73728"); e(f"v_mul_lo_u32 v{U+3}, v{U+3}, s46"); e(f"v_add_u32 v{U+3}, {WR}, v{U+3}")
    e("s_mul_i32 s58, s45, 5"); e("s_lshl_b32 s59, s45, 2"); e("s_add_u32 s59, s59, 4"); e("s_cmp_lt_u32 s45, 4"); e("s_cselect_b32 s58, s58, s59")
    for tt in range(5):
        e(f"s_add_u32 s46, s58, {tt}"); e(f"v_xor_b32 v{U+2}, s46, v{U+5}"); e(f"v_lshl_add_u32 v{U+2}, v{U+2}, 5, v{U+4}")
        e(f"v_add_u32 v{AAN+tt}, v{U+2}, v{U+6}"); e(f"v_add_u32 v{AAW+tt}, v{U+2}, v{U+3}")
    e(f"v_and_b32 v{U+1}, 15, v2"); e(f"v_xor_b32 v{U+2}, v{U+1}, v{U}"); e(f"v_lshlrev_b32 v{U+1}, 8, v{U+1}")
    for j in range(4):
        e(f"v_xor_b32 v{U+3}, {4*j}, v{U+2}"); e(f"v_lshl_add_u32 v{BAD+j}, v{U+3}, 4, v{U+1}")
    def read_b(s): return [f"ds_read_b128 {vr(BFR[s&1]+qt*4,4)}, v{BAD+(s&3)} offset:{(s>>2)*28672+qt*4096}" for qt in range(7)]
    for x in read_b(0): e(x)
    e(f"v_lshlrev_b32 v{U}, 3, v2"); e("s_lshl_b32 s46, s58, 9"); e(f"v_add_u32 v{U}, s46, v{U}")
    e("s_cmp_ge_u32 s45, 4"); e(f"s_cbranch_scc1 {label}_p3b")
    vq3 = list(a.vmq)
    for nt in (5, 4):
        if nt == 4: a.label(f"{label}_p3b"); a.vmq = list(vq3)
        for s in range(8):
            a.vm_wait([("wo", 2*s), ("wo", 2*s+1)], "lgkmcnt(0)"); e("s_barrier")
            if s >= 1:
                for u in (2*s+3, 2*s+4):
                    if u < 16: issue_wo(a, u)
            wrap = (2*s) % 5 == 4
            for tt in range(nt):
                for hh in range(2):
                    if wrap: e(f"ds_read_b64_tr_b16 {vr(AFR+tt*4+hh*2,2)}, v{AAW+tt} offset:{hh*4608}")
                    else: e(f"ds_read_b64_tr_b16 {vr(AFR+tt*4+hh*2,2)}, v{AAN+tt} offset:{((2*s)%5)*18432+hh*4608}")
            nb = 7 if s < 7 else 0
            if s < 7:
                for x in read_b(s+1): e(x)
            for tt in range(nt):
                e(f"s_waitcnt lgkmcnt({2*(nt-1-tt)+nb})")
                for qt in range(7):
                    d = ACC3 + (tt*7+qt)*4
                    e(f"v_mfma_f32_16x16x32_bf16 {vr(d,4)}, {vr(AFR+tt*4,4)}, {vr(BFR[s&1]+qt*4,4)}, " + ("0" if s == 0 else vr(d,4)))
        e("s_nop 7")
        for tt in range(nt):
            for qt in range(7):
                d = ACC3 + (tt*7+qt)*4
                e(f"v_cvt_pk_bf16_f32 v{d}, v{d}, v{d+1}"); e(f"v_cvt_pk_bf16_f32 v{d+1}, v{d+2}, v{d+3}")
                e(f"s_mov_b32 s46, {(qt*36+tt)*512}")
                e(f"buffer_store_dwordx2 {vr(d,2)}, v{U}, s[36:39], s46 offen")
        if "stamp" in exp and nt == 5:
            stamp(a)
            e("s_load_dwordx2 s[64:65], s[0:1], 88"); e("s_waitcnt lgkmcnt(0)")
            e("s_mov_b32 s66, 256"); e("s_mov_b32 s67, 0x00020000")
            e("s_cmp_lg_u32 s2, 37"); e(f"s_cbranch_scc1 {label}_exit")
            e("s_cmp_lg_u32 s45, 0"); e(f"s_cbranch_scc1 {label}_exit")
            e("v_lshlrev_b32 v31, 2, v2"); e("v_cmp_gt_u32 vcc, 32, v2"); e("s_and_saveexec_b64 s[62:63], vcc")
            e("buffer_store_dword v30, v31, s[64:67], 0 offen")
        e("s_endpgm")
    for lb, sl in slow:
        a.label(lb)
        for x in sl: e(x)
    a.label(f"{label}_w7")
    a.vmq = vmq_save
    for s in range(16): top(a, s)
    e(f"s_branch {label}_p3")
    a.label(f"{label}_exit"); e("s_endpgm")
    desc = f""".amdhsa_kernel {label}
  .amdhsa_next_free_vgpr 252
  .amdhsa_next_free_sgpr 80
  .amdhsa_accum_offset 252
  .amdhsa_group_segment_fixed_size 0
  .amdhsa_kernarg_size 104
  .amdhsa_user_sgpr_count 2
  .amdhsa_user_sgpr_kernarg_segment_ptr 1
  .amdhsa_system_sgpr_workgroup_id_x 1
.end_amdhsa_kernel
"""
    return a.text(), desc
```

```python
import sys
sys.path.insert(0, "work")
from gen_k1_v1 import *; from gen_k2 import NAME; from gen_k3 import *
ref = open(f"cdna_kernels/{NAME}.s.ref").read().split("\n")
hdr = [l for l in ref if l.startswith(";") and "@launch" not in l]
EXP = sys.argv[2] if len(sys.argv) > 2 else ""
t1, d1 = gen_k1(exp=EXP); t2, d2 = gen_k3()
out = "\n".join(hdr) + f"""
; @launch kernel=attn_kernel grid=(256,1,1) block=(512,1,1) lds={K1_LDS}
; @launch kernel=reduce_kernel grid=(504,1,1) block=(256,1,1) lds=0
.amdgcn_target "amdgcn-amd-amdhsa--gfx950"
.text
""" + t1 + t2 + """.section .rodata,"a"
.p2align 6
""" + d1 + ".p2align 6\n" + d2
open(sys.argv[1] if len(sys.argv) > 1 else f"cdna_kernels/{NAME}.s", "w").write(out)
print(len(out))
```
